```python
import torch

def _softmax(x, axis=-1):
    return torch.softmax(x, dim=axis)
def _gelu(x):
    return torch.nn.functional.gelu(x, approximate="tanh")
def _silu(x):
    return torch.nn.functional.silu(x)
def _sigmoid(x):
    return torch.sigmoid(x)
def _layernorm(x, axis=-1, eps=1e-5):
    m = x.mean(dim=axis, keepdim=True)
    v = x.var(dim=axis, keepdim=True, unbiased=False)
    return (x - m) / torch.sqrt(v + eps)
def _scatter_add(tgt, idx, src, axis=0):
    return tgt.clone().index_add_(axis, idx, src)
def _segment_sum(src, seg, n):
    out = torch.zeros((n,) + src.shape[1:], dtype=src.dtype)
    return out.index_add_(0, seg, src)
def _pad(x, pw):
    flat = tuple(v for pair in reversed(pw) for v in pair)
    return torch.nn.functional.pad(x, flat)

kernel_name = 'parallel_sum__ssm_conv_h3__glu_gated_glu__prompt'

def setup_inputs():

    _w = (lambda a: (lambda t: t.to(torch.bfloat16) if t.is_floating_point() else t)(torch.as_tensor(a)))
    def _A_setup():
        B, S, D = 1, 2048, 1024
        ks = 4
        return {
            "q": _w((lambda *s: torch.randn(*s, dtype=torch.bfloat16) * 0.05)(B, S, D)),
            "k": _w((lambda *s: torch.randn(*s, dtype=torch.bfloat16) * 0.8)(B, S, D)),
            "v": _w((lambda *s: torch.randn(*s, dtype=torch.bfloat16) * 0.8)(B, S, D)),
            "shift_k": _w((lambda *s: torch.randn(*s, dtype=torch.bfloat16) * 0.8)(D, ks) * 0.5),
            "ssm_k": _w((lambda *s: torch.randn(*s, dtype=torch.bfloat16) * 0.8)(D, S) * (1.0 / S ** 0.5)),
            "ssm_D": _w((lambda *s: torch.randn(*s, dtype=torch.bfloat16) * 0.8)(D)),
        }
    _A_in = _A_setup()

    def _B_setup():
        B, S, D, F = 1, 2048, 1024, 3584
        return {
            "x": _w((lambda *s: torch.randn(*s, dtype=torch.bfloat16) * 0.05)(B, S, D)),
            "w_gate": _w((lambda *s: torch.randn(*s, dtype=torch.bfloat16) * 0.05)(D, F)),
            "w_up": _w((lambda *s: torch.randn(*s, dtype=torch.bfloat16) * 0.05)(D, F)),
            "w_down": _w((lambda *s: torch.randn(*s, dtype=torch.bfloat16) * 0.05)(F, D)),
        }
    _B_in = _B_setup()

    return {
        "A_q": _A_in["q"],
        "A_k": _A_in["k"],
        "A_v": _A_in["v"],
        "A_shift_k": _A_in["shift_k"],
        "A_ssm_k": _A_in["ssm_k"],
        "A_ssm_D": _A_in["ssm_D"],
        "B_x": _B_in["x"],
        "B_w_gate": _B_in["w_gate"],
        "B_w_up": _B_in["w_up"],
        "B_w_down": _B_in["w_down"],
    }

def reference(A_q, A_k, A_v, A_shift_k, A_ssm_k, A_ssm_D, B_x, B_w_gate, B_w_up, B_w_down):
    def _A_ref(q, k, v, shift_k, ssm_k, ssm_D):
        B, S, D = q.shape
        ks = shift_k.shape[-1]
        k_pad = _pad(k, ((0, 0), (ks - 1, 0), (0, 0)))
        k_shift = torch.zeros_like(k)
        for t in range(ks):
            k_shift = k_shift + k_pad[:, t:t + S, :] * shift_k[:, ks - 1 - t][None, None, :]
        kv = k_shift * v
        L = 2 * S
        kv_pad = _pad(kv, ((0, 0), (0, S), (0, 0)))
        kf_pad = _pad(ssm_k, ((0, 0), (0, S)))
        kv_f = (lambda x, axes=(-2,-1): torch.fft.rfft2(x.float(), dim=axes))(kv_pad[:, None, :, :], axes=(1, 2))
        kf_f = (lambda x, axes=(-2,-1): torch.fft.rfft2(x.float(), dim=axes))(kf_pad[:, None, :], axes=(1, 2))
        kf_f = (lambda x, *d: x.permute(*d))(kf_f, 1, 2, 0)
        y_f = kv_f * kf_f[None, :, :, :]
        y = (lambda x, s, axes=(-2,-1): torch.fft.irfft2(x, s=s, dim=axes).to(torch.bfloat16))(y_f, (1, L), axes=(1, 2))[:, 0, :S, :]
        y = y + kv * ssm_D[None, None, :]
        return q * y

    def _B_ref(x, w_gate, w_up, w_down):
        g = torch.einsum("bsd,df->bsf", x, w_gate)
        u = torch.einsum("bsd,df->bsf", x, w_up)
        h = _sigmoid(g) * u
        return torch.einsum("bsf,fd->bsd", h, w_down)

    x = A_q
    xn = _layernorm(x, axis=-1)
    return x + _A_ref(xn, A_k, A_v, A_shift_k, A_ssm_k, A_ssm_D) + _B_ref(xn, B_w_gate, B_w_up, B_w_down)
```

```python
class Asm:
    def __init__(self):
        self.lines = []
    def __call__(self, s=""):
        for l in s.strip("\n").split("\n"):
            self.lines.append("    " + l.strip() if not l.strip().endswith(":") else l.strip())
    def text(self):
        return "\n".join(self.lines) + "\n"

def kernel_wrap(name, body, vgpr, sgpr=100, accum=None):
    if accum is None:
        accum = min(256, (vgpr + 3) // 4 * 4)
    return f""".text
.globl {name}
.p2align 8
.type {name},@function
{name}:
{body}
.section .rodata,"a"
.p2align 6
.amdhsa_kernel {name}
  .amdhsa_next_free_vgpr {vgpr}
  .amdhsa_next_free_sgpr {sgpr}
  .amdhsa_accum_offset {accum}
  .amdhsa_group_segment_fixed_size 0
  .amdhsa_kernarg_size 104
  .amdhsa_user_sgpr_count 2
  .amdhsa_user_sgpr_kernarg_segment_ptr 1
  .amdhsa_system_sgpr_workgroup_id_x 1
.end_amdhsa_kernel
"""
def srd(a, d, base_s, nbytes):
    a(f"s_mov_b32 s{d}, s{base_s}")
    a(f"s_mov_b32 s{d+1}, s{base_s+1}")
    a(f"s_mov_b32 s{d+2}, {nbytes}")
    a(f"s_mov_b32 s{d+3}, 0x00020000")
```

```python
from asmlib import Asm
from gen import *

G1_XB = 0
G1_GB = 16384
G1_UB = G1_GB + 8192 + 16
G1_ST = G1_UB + 8192
G1_NS = 4
G1_LDS = G1_NS * G1_ST

def interleave(a, mf, fill, start=0, every=1):
    fi = 0
    for i, m in enumerate(mf):
        a(m)
        if i >= start and (i - start) % every == 0 and fi < len(fill):
            f = fill[fi]; fi += 1
            for s in (f if isinstance(f, list) else [f]):
                a(s)
    while fi < len(fill):
        f = fill[fi]; fi += 1
        for s in (f if isinstance(f, list) else [f]):
            a(s)

def gen_gemm1():
    a = Asm()
    a("s_cmp_ge_u32 s2, 256")
    a("s_cbranch_scc1 Lg1_end")
    a("s_load_dwordx4 s[4:7], s[0:1], 56")
    a("s_load_dwordx2 s[8:9], s[0:1], 96")
    a("v_and_b32 v1, 63, v0")
    a("v_lshrrev_b32 v2, 6, v0")
    a("s_and_b32 s10, s2, 7")
    a("v_readfirstlane_b32 s11, v2")
    a("s_lshr_b32 s12, s2, 3")
    a("s_and_b32 s13, s10, 1")
    a("s_lshl_b32 s13, s13, 2")
    a("s_and_b32 s14, s12, 3")
    a("s_add_u32 s13, s13, s14")
    a("s_lshr_b32 s14, s10, 1")
    a("s_lshl_b32 s14, s14, 3")
    a("s_lshr_b32 s15, s12, 2")
    a("s_add_u32 s14, s14, s15")
    a("s_waitcnt lgkmcnt(0)")
    srd(a, 16, 8, SZ_X, WS_XN)
    srd(a, 24, 8, SZ_H, WS_H)
    a("s_bitcmp1_b32 s11, 0")
    a("s_cselect_b32 s20, s6, s4")
    a("s_cselect_b32 s21, s7, s5")
    a(f"s_mov_b32 s22, {SZ_W}")
    a("s_mov_b32 s23, 0x00020000")
    SX, SW, MX, MW = 28, 29, 30, 31
    a(f"s_lshl_b32 s{SX}, s13, 19")
    a(f"s_mul_i32 s{SW}, s14, 224")
    a(f"s_lshl_b32 s{MX}, s11, 12")
    a("s_and_b32 s33, s11, 1")
    a(f"s_mul_i32 s{MW}, s33, {G1_UB - G1_GB}")
    a(f"s_add_u32 s{MW}, s{MW}, {G1_GB}")
    a("s_lshr_b32 s32, s11, 1")
    a("s_lshl_b32 s33, s32, 12")
    a(f"s_add_u32 s{MW}, s{MW}, s33")
    a("s_and_b32 s34, s11, 1")
    VX = 2; VW = 3
    a(f"v_lshlrev_b32 v{VX}, 4, v1")
    a(f"v_add_u32 v{VX}, s{MX}, v{VX}")
    a("s_lshl_b32 s35, s32, 8")
    a("s_movk_i32 s36, 4682")
    a("s_movk_i32 s37, 7168")
    for i in range(4):
        c, rho, col, k = 8, 9, 10, 11
        a(f"v_add_u32 v{c}, s35, v1")
        if i: a(f"v_add_u32 v{c}, {64*i}, v{c}")
        a(f"v_mul_u32_u24 v{rho}, s36, v{c}")
        a(f"v_lshrrev_b32 v{rho}, 16, v{rho}")
        a(f"v_mul_u32_u24 v{col}, 14, v{rho}")
        a(f"v_sub_u32 v{col}, v{c}, v{col}")
        a(f"v_and_b32 v{k}, 0x13, v{rho}")
        a(f"v_bfe_u32 v12, v{rho}, 2, 1")
        a(f"v_lshl_or_b32 v{k}, v12, 3, v{k}")
        a(f"v_bfe_u32 v12, v{rho}, 3, 1")
        a(f"v_lshl_or_b32 v{k}, v12, 2, v{k}")
        a(f"v_mul_u32_u24 v{k}, s37, v{k}")
        a(f"v_lshl_add_u32 v{VW+i}, v{col}, 4, v{k}")
        if i: a(f"v_subrev_u32 v{VW+i}, {1024*i}, v{VW+i}")
        if i == 3:
            a(f"v_cmp_lt_u32 vcc, 447, v{c}")
            a("v_bfrev_b32 v12, 1")
            a("s_nop 0")
            a(f"v_cndmask_b32 v{VW+i}, v{VW+i}, v12, vcc")
    def dma(slot):
        L = []
        L.append([f"s_add_u32 m0, s{MX}, {slot*G1_ST + G1_XB}", "s_nop 0",
                  f"buffer_load_dwordx4 v{VX}, s[16:19], s{SX} offen lds"])
        for i in range(1, 4):
            L.append(f"buffer_load_dwordx4 v{VX}, s[16:19], s{SX} offen offset:{1024*i} lds")
        L.append([f"s_add_u32 m0, s{MW}, {slot*G1_ST}", f"s_add_u32 s{SX}, s{SX}, 16384",
                  f"buffer_load_dwordx4 v{VW}, s[20:23], s{SW} offen lds"])
        for i in range(1, 4):
            L.append(f"buffer_load_dwordx4 v{VW+i}, s[20:23], s{SW} offen offset:{1024*i} lds")
        L.append(f"s_add_u32 s{SW}, s{SW}, {32*7168}")
        return L
    def flat(L):
        for f in L:
            for s in (f if isinstance(f, list) else [f]):
                a(s)
    for s in range(G1_NS):
        flat(dma(s))
    AN, AM, BX = 8, 10, 12
    a("v_lshrrev_b32 v14, 5, v1")
    a("v_lshlrev_b32 v14, 4, v14")
    a("v_bfe_u32 v15, v1, 4, 1")
    a("v_lshl_add_u32 v14, v15, 2, v14")
    a("v_bfe_u32 v15, v1, 2, 2")
    a("v_add_u32 v14, v14, v15")
    a("v_mul_u32_u24 v14, 224, v14")
    a("v_and_b32 v15, 3, v1")
    a("v_lshl_add_u32 v14, v15, 3, v14")
    a("s_lshl_b32 s35, s32, 7")
    a(f"v_add_u32 v{AN}, s35, v14")
    a("s_lshl_b32 s35, s32, 4")
    a("s_add_u32 s35, s35, 96")
    a(f"v_add_u32 v{AM}, s35, v14")
    a("v_lshrrev_b32 v15, 1, v15")
    a(f"v_lshl_add_u32 v{AM}, v15, 13, v{AM}")
    a("s_lshl_b32 s35, s34, 13")
    a(f"v_lshlrev_b32 v{BX}, 4, v1")
    a(f"v_add_u32 v{BX}, s35, v{BX}")
    for r_ in (AN, AM, BX):
        a(f"v_add_u32 v{r_+1}, {2*G1_ST}, v{r_}")
    ACC = 32
    def acc(t, j): return ACC + (t*8 + j)*4
    FA = [0, 60]; FB = [28, 88]
    for i in range(224):
        a(f"v_mov_b32 v{ACC+i}, 0")
    def reads(slot, st):
        L = []
        z = slot >> 1; so = (slot & 1) * G1_ST
        for j in range(8):
            L.append(f"ds_read_b128 {ar(FB[st]+4*j,4)}, v{BX+z} offset:{so + G1_XB + 1024*j}")
        for t in range(7):
            for hb in range(2):
                if t < 6:
                    off = so + (G1_GB if t < 3 else G1_UB) + 32*(t % 3) + 1792*hb
                    L.append(f"ds_read_b64_tr_b16 {ar(FA[st]+4*t+2*hb,2)}, v{AN+z} offset:{off}")
                else:
                    L.append(f"ds_read_b64_tr_b16 {ar(FA[st]+4*t+2*hb,2)}, v{AM+z} offset:{so + G1_GB + 1792*hb}")
        return L
    def mfmas(st):
        return [f"v_mfma_f32_16x16x32_bf16 {vr(acc(t,j),4)}, {ar(FA[st]+4*t,4)}, {ar(FB[st]+4*j,4)}, {vr(acc(t,j),4)}"
                for t in range(7) for j in range(8)]
    a(f"s_waitcnt vmcnt({8*(G1_NS-1)})")
    a("s_barrier")
    for s in reads(0, 0):
        a(s)
    def stage(s, do_dma, do_read, vm):
        slot = s % G1_NS; st = s & 1
        a(f"s_waitcnt vmcnt({vm}) lgkmcnt(0)")
        a("s_barrier")
        fill = []
        rd = reads((s + 1) % G1_NS, st ^ 1) if do_read else []
        dm = dma(slot) if do_dma else []
        while rd or dm:
            for _ in range(3):
                if rd: fill.append(rd.pop(0))
            if dm: fill.append(dm.pop(0))
        interleave(a, mfmas(st), fill, start=0, every=1)
    nit = 32 // G1_NS - 1
    a(f"s_mov_b32 s38, {nit}")
    a("Lg1_loop:")
    for s in range(G1_NS):
        stage(s, True, True, 8*(G1_NS-2))
    a("s_sub_u32 s38, s38, 1")
    a("s_cmp_lg_u32 s38, 0")
    a("s_cbranch_scc1 Lg1_loop")
    for s in range(G1_NS):
        rem = G1_NS - 2 - s
        stage(s, False, s < G1_NS - 1, 8*max(rem, 0))
    a("s_lshl_b32 s35, s13, 1")
    a("s_add_u32 s35, s35, s34")
    a(f"s_mul_i32 s35, s35, {112*8192}")
    a("s_mul_i32 s36, s14, 7")
    a("s_lshl_b32 s37, s32, 2")
    a("s_add_u32 s37, s37, s36")
    def soff(dst, ft_s, add):
        a(f"s_add_u32 s40, s{ft_s}, {add}")
        a("s_lshr_b32 s41, s40, 1")
        a("s_lshl_b32 s41, s41, 13")
        a("s_and_b32 s40, s40, 1")
        a("s_lshl_b32 s40, s40, 3")
        a("s_add_u32 s41, s41, s40")
        a(f"s_add_u32 s{dst}, s41, s35")
        a(f"s_add_u32 s{dst+1}, s{dst}, 4096")
    for i in range(3):
        soff(44 + 2*i, 37, i)
    soff(50, 36, 3)
    a("v_lshlrev_b32 v2, 4, v1")
    a("v_and_b32 v3, 31, v1")
    a("v_lshlrev_b32 v3, 4, v3")
    a("v_lshrrev_b32 v4, 5, v1")
    a("v_lshl_add_u32 v3, v4, 10, v3")
    a("s_lshl_b32 s40, s32, 9")
    a("v_add_u32 v3, s40, v3")
    a("s_mov_b32 s42, 0xbfb8aa3b")
    a("s_mov_b32 s43, 0xbfb8aa3b")
    a("s_nop 4")
    T = 8
    def hcalc(g, u, tmp):
        round_pair(a, g, tmp); round_pair(a, g + 2, tmp + 1)
        round_pair(a, u, tmp); round_pair(a, u + 2, tmp + 1)
        a(f"v_pk_mul_f32 {vr(g,2)}, {vr(g,2)}, s[42:43]")
        a(f"v_pk_mul_f32 {vr(g+2,2)}, {vr(g+2,2)}, s[42:43]")
        for i in range(4): a(f"v_exp_f32 v{g+i}, v{g+i}")
        a(f"v_pk_add_f32 {vr(g,2)}, {vr(g,2)}, 1.0 op_sel_hi:[1,0]")
        a(f"v_pk_add_f32 {vr(g+2,2)}, {vr(g+2,2)}, 1.0 op_sel_hi:[1,0]")
        for i in range(4): a(f"v_rcp_f32 v{g+i}, v{g+i}")
        a("s_nop 0")
        round_pair(a, g, tmp); round_pair(a, g + 2, tmp + 1)
        a(f"v_pk_mul_f32 {vr(g,2)}, {vr(g,2)}, {vr(u,2)}")
        a(f"v_pk_mul_f32 {vr(g+2,2)}, {vr(g+2,2)}, {vr(u+2,2)}")
        a(f"v_cvt_pk_bf16_f32 v{g}, v{g}, v{g+1}")
        a(f"v_cvt_pk_bf16_f32 v{g+1}, v{g+2}, v{g+3}")
    for i in range(3):
        for j in range(8):
            g = acc(i, j); u = acc(3 + i, j)
            hcalc(g, u, T)
            a(f"buffer_store_dwordx2 {vr(g,2)}, v2, s[24:27], s{44+2*i+(j>>2)} offen offset:{1024*(j&3)}")
    for j in range(0, 8, 2):
        g = acc(6, j); u = acc(6, j + 1)
        for i in range(4):
            a(f"v_permlane32_swap_b32 v{g+i}, v{u+i}")
        a("s_nop 0")
        hcalc(g, u, T)
        a(f"buffer_store_dwordx2 {vr(g,2)}, v3, s[24:27], s{50+(j>>2)} offen offset:{1024*(j&3)}")
    a("Lg1_end:")
    a("s_endpgm")
    return kernel_wrap("gemm1_kernel", a.text(), 256 + 120, 256)

G2_D = 4
G2_SL = 4224
G2_LDS = 98304

def gen_gemm2():
    a = Asm()
    a("s_cmp_ge_u32 s2, 256")
    a("s_cbranch_scc1 Lg2_end")
    a("s_load_dwordx2 s[4:5], s[0:1], 0")
    a("s_load_dwordx4 s[8:11], s[0:1], 72")
    a("s_load_dwordx2 s[6:7], s[0:1], 96")
    a("v_and_b32 v1, 63, v0")
    a("v_lshrrev_b32 v2, 6, v0")
    a("s_and_b32 s12, s2, 7")
    a("v_readfirstlane_b32 s13, v2")
    a("s_lshr_b32 s14, s2, 3")
    a("s_lshr_b32 s15, s12, 1")
    a("s_lshl_b32 s15, s15, 2")
    a("s_and_b32 s16, s14, 3")
    a("s_add_u32 s15, s15, s16")
    a("s_and_b32 s16, s12, 1")
    a("s_lshl_b32 s16, s16, 3")
    a("s_lshr_b32 s17, s14, 2")
    a("s_add_u32 s16, s16, s17")
    a("s_waitcnt lgkmcnt(0)")
    srd(a, 20, 6, SZ_H, WS_H)
    srd(a, 24, 8, SZ_W)
    srd(a, 28, 4, SZ_X)
    srd(a, 32, 6, SZ_X, WS_XN)
    srd(a, 36, 6, SZ_X, WS_ZT)
    srd(a, 40, 10, SZ_X)
    SH, SW, ML = 44, 45, 46
    a(f"s_mul_i32 s{SH}, s15, 112")
    a(f"s_add_u32 s{SH}, s{SH}, s13")
    a(f"s_lshl_b32 s{SH}, s{SH}, 13")
    a(f"s_lshl_b32 s{SW}, s13, 16")
    a("s_lshl_b32 s17, s16, 7")
    a(f"s_add_u32 s{SW}, s{SW}, s17")
    a(f"s_mul_i32 s{ML}, s13, {G2_D*G2_SL}")
    VH, VW, VA = 2, 6, 10
    a("v_lshlrev_b32 v11, 4, v1")
    for p in range(4):
        a(f"s_add_u32 s17, s13, {p}")
        a("s_and_b32 s17, s17, 3")
        a("s_lshl_b32 s17, s17, 11")
        a(f"v_add_u32 v{VH+p}, s17, v11")
    a("v_lshrrev_b32 v12, 5, v1")
    a("v_lshlrev_b32 v12, 4, v12")
    a("v_bfe_u32 v13, v1, 4, 1")
    a("v_lshl_add_u32 v12, v13, 3, v12")
    a("v_bfe_u32 v13, v1, 3, 1")
    a("v_add_u32 v12, v12, v13")
    a("v_lshlrev_b32 v12, 11, v12")
    a("v_and_b32 v13, 7, v1")
    a(f"v_lshl_add_u32 v{VW}, v13, 4, v12")
    for i in range(1, 4):
        a(f"v_add_u32 v{VW+i}, {(4*(i>>1)+2*(i&1))*2048 - 1056*i}, v{VW}")
    HB = 0
    FA = [128, 144]
    ACC = 32
    def acc(jj, ct): return ACC + (jj*4 + ct)*4
    def dmaW(slot):
        L = [[f"s_add_u32 m0, s{ML}, {slot*G2_SL}", "s_nop 0", f"buffer_load_dwordx4 v{VW}, s[24:27], s{SW} offen lds"]]
        for i in range(1, 4):
            L.append(f"buffer_load_dwordx4 v{VW+i}, s[24:27], s{SW} offen offset:{1056*i} lds")
        L[-1] = [L[-1], f"s_add_u32 s{SW}, s{SW}, {4*32*2048}"]
        return L
    def ldh(slot, jj):
        s = f"buffer_load_dwordx4 {ar(HB+slot*32+4*jj,4)}, v{VH+(jj>>1)}, s[20:23], s{SH} offen offset:{1024*(jj&1)}"
        return [s, f"s_add_u32 s{SH}, s{SH}, {4*8192}"] if jj == 7 else [s]
    def flat(L):
        for f in L:
            for s in (f if isinstance(f, list) else [f]):
                a(s)
    for s in range(G2_D):
        flat(dmaW(s))
        for jj in range(8): flat(ldh(s, jj))
    a("v_bfe_u32 v12, v1, 4, 1")
    a("v_bfe_u32 v13, v1, 3, 1")
    a("v_lshl_add_u32 v12, v12, 1, v13")
    a("v_mul_u32_u24 v12, 1056, v12")
    a("v_bfe_u32 v13, v1, 2, 1")
    a("v_lshl_add_u32 v12, v13, 7, v12")
    a("v_lshrrev_b32 v13, 5, v1")
    a("v_lshl_add_u32 v12, v13, 8, v12")
    a("v_and_b32 v13, 3, v1")
    a("v_lshl_add_u32 v12, v13, 3, v12")
    a(f"v_add_u32 v{VA}, s{ML}, v12")
    for i in range(128):
        a(f"v_mov_b32 v{ACC+i}, 0")
    def reads(slot, st):
        return [f"ds_read_b64_tr_b16 {ar(FA[st]+4*ct+2*hb,2)}, v{VA} offset:{slot*G2_SL + 512*hb + 32*ct}"
                for ct in range(4) for hb in range(2)]
    a(f"s_waitcnt vmcnt({12*G2_D - 4})")
    for s in reads(0, 0): a(s)
    def step(t, load, nxt, vm):
        slot = t % G2_D; st = t & 1
        a(f"s_waitcnt vmcnt({vm}) lgkmcnt(0)")
        rd = reads((t + 1) % G2_D, st ^ 1) if nxt else []
        dm = dmaW(slot) if load else []
        for jj in range(8):
            for ct in range(4):
                a(f"v_mfma_f32_16x16x32_bf16 {vr(acc(jj,ct),4)}, {ar(FA[st]+4*ct,4)}, {ar(HB+slot*32+4*jj,4)}, {vr(acc(jj,ct),4)}")
                if dm: flat([dm.pop(0)])
                elif rd and ct in (0, 2): a(rd.pop(0))
            if load and jj >= 1: flat(ldh(slot, jj - 1))
        if load: flat(ldh(slot, 7))
    a(f"s_mov_b32 s47, {28 // G2_D - 1}")
    a("Lg2_loop:")
    for t in range(G2_D):
        step(t, True, True, 12*(G2_D-1) - 4)
    a("s_sub_u32 s47, s47, 1")
    a("s_cmp_lg_u32 s47, 0")
    a("s_cbranch_scc1 Lg2_loop")
    for t in range(G2_D):
        step(t, False, t < G2_D - 1, max(12*(G2_D-1-t) - 4, 0))
    X, XN, Z = 160, 176, 192
    for i in range(32): a(f"v_mov_b32 v{Z+i}, 0")
    a("v_and_b32 v12, 15, v1")
    a("v_lshrrev_b32 v13, 4, v1")
    a("s_lshl_b32 s48, s15, 7")
    a("s_lshl_b32 s49, s13, 5")
    a("s_add_u32 s48, s48, s49")
    a("s_lshl_b32 s49, s16, 6")
    a("v_lshlrev_b32 v14, 11, v12")
    a("v_lshl_add_u32 v14, v13, 3, v14")
    a("s_lshl_b32 s50, s48, 11")
    a("s_lshl_b32 s51, s49, 1")
    a("s_add_u32 s50, s50, s51")
    a("s_add_u32 s51, s50, 32768")
    a("v_lshlrev_b32 v15, 4, v12")
    a("v_lshrrev_b32 v16, 1, v13")
    a("v_lshl_add_u32 v15, v16, 8, v15")
    a("v_and_b32 v16, 1, v13")
    a("v_lshl_add_u32 v15, v16, 3, v15")
    a("s_lshr_b32 s52, s48, 8")
    a("s_lshl_b32 s52, s52, 5")
    a("s_lshl_b32 s53, s16, 1")
    a("s_add_u32 s52, s52, s53")
    a("s_lshl_b32 s52, s52, 4")
    a("s_bfe_u32 s53, s48, 0x40004")
    a("s_add_u32 s52, s52, s53")
    a("s_lshl_b32 s52, s52, 10")
    a("s_add_u32 s53, s52, 16384")
    a("v_lshlrev_b32 v16, 14, v13")
    a("v_lshl_add_u32 v16, v12, 1, v16")
    a("s_lshl_b32 s54, s49, 12")
    a("s_lshl_b32 s55, s48, 1")
    a("s_add_u32 s54, s54, s55")
    for jj in range(2):
        for ct in range(4):
            a(f"buffer_load_dwordx2 {vr(X+(jj*4+ct)*2,2)}, v14, s[28:31], s{50+jj} offen offset:{32*ct}")
            a(f"buffer_load_dwordx2 {vr(XN+(jj*4+ct)*2,2)}, v15, s[32:35], s{52+(ct>>1)} offen offset:{1024*jj + 512*(ct&1)}")
    for ct in range(4):
        for i in range(4):
            a(f"s_add_u32 s55, s54, {(16*ct+i)*4096}")
            for jj in range(2):
                a(f"buffer_load_short_d16_hi v{Z+(jj*4+ct)*4+i}, v16, s[36:39], s55 offen offset:{32*jj}")
    a("s_barrier")
    a("v_lshlrev_b32 v11, 4, v1")
    for p in range(1, 4):
        a(f"s_add_u32 s17, s13, {p}")
        a("s_and_b32 s17, s17, 3")
        a("s_mul_i32 s17, s17, 24576")
        a(f"v_add_u32 v17, s17, v11")
        for tl in range(8):
            a(f"ds_write_b128 v17, {vr(ACC+(8*p+tl)*4,4)} offset:{(p-1)*8192 + tl*1024}")
    a("s_mul_i32 s17, s13, 24576")
    a("v_add_u32 v17, s17, v11")
    a("s_waitcnt lgkmcnt(0)")
    a("s_barrier")
    R = ACC + 32
    for i in range(24):
        a(f"ds_read_b128 {vr(R+4*i,4)}, v17 offset:{1024*i}")
    T = 224
    for tl in range(8):
        b = ACC + 4*tl
        if tl == 0:
            a("s_waitcnt lgkmcnt(0)")
        for p in range(3):
            for h in range(2):
                a(f"v_pk_add_f32 {vr(b+2*h,2)}, {vr(b+2*h,2)}, {vr(R+(p*8+tl)*4+2*h,2)}")
    a("s_waitcnt vmcnt(0)")
    for tl in range(8):
        jj, ct = tl >> 2, tl & 3
        b = ACC + 4*tl; z = Z + 4*tl
        P, Q = T + 2, T + 6
        round_pair(a, b, T); round_pair(a, b + 2, T + 1)
        unpack2(a, P, P + 1, XN + 2*tl); unpack2(a, P + 2, P + 3, XN + 2*tl + 1)
        unpack2(a, Q, Q + 1, X + 2*tl); unpack2(a, Q + 2, Q + 3, X + 2*tl + 1)
        a(f"v_pk_mul_f32 {vr(P,2)}, {vr(P,2)}, {vr(z,2)}")
        a(f"v_pk_mul_f32 {vr(P+2,2)}, {vr(P+2,2)}, {vr(z+2,2)}")
        round_pair(a, P, T); round_pair(a, P + 2, T + 1)
        a(f"v_pk_add_f32 {vr(P,2)}, {vr(P,2)}, {vr(Q,2)}")
        a(f"v_pk_add_f32 {vr(P+2,2)}, {vr(P+2,2)}, {vr(Q+2,2)}")
        round_pair(a, P, T); round_pair(a, P + 2, T + 1)
        a(f"v_pk_add_f32 {vr(P,2)}, {vr(P,2)}, {vr(b,2)}")
        a(f"v_pk_add_f32 {vr(P+2,2)}, {vr(P+2,2)}, {vr(b+2,2)}")
        a(f"v_cvt_pk_bf16_f32 v{b}, v{P}, v{P+1}")
        a(f"v_cvt_pk_bf16_f32 v{b+1}, v{P+2}, v{P+3}")
        a(f"buffer_store_dwordx2 {vr(b,2)}, v14, s[40:43], s{50+jj} offen offset:{32*ct}")
    a("Lg2_end:")
    a("s_endpgm")
    return kernel_wrap("gemm2_kernel", a.text(), 256 + 160, 256)
```

```python
import sys
from asmlib import Asm

NAME = "parallel_sum__ssm_conv_h3__glu_gated_glu__prompt"
MB = 1 << 20
WS_XN, WS_UR, WS_ZT, WS_H = 0, 4 * MB, 8 * MB, 12 * MB
SZ_X = 2048 * 1024 * 2
SZ_W = 1024 * 3584 * 2
SZ_H = 2048 * 3584 * 2
KA = dict(q=0, k=8, v=16, sk=24, ssm=32, D=40, bx=48, wg=56, wu=64, wd=72, out=80, dbg=88, ws=96)

def vr(b, n=1):
    return f"v{b}" if n == 1 else f"v[{b}:{b+n-1}]"
def ar(b, n=1):
    return f"a{b}" if n == 1 else f"a[{b}:{b+n-1}]"
def sr(b, n=1):
    return f"s{b}" if n == 1 else f"s[{b}:{b+n-1}]"

def srd(a, d, base_s, nbytes, off=0):
    if off:
        a(f"s_add_u32 s{d}, s{base_s}, {off}")
        a(f"s_addc_u32 s{d+1}, s{base_s+1}, 0")
    else:
        a(f"s_mov_b32 s{d}, s{base_s}")
        a(f"s_mov_b32 s{d+1}, s{base_s+1}")
    a(f"s_mov_b32 s{d+2}, {nbytes}")
    a(f"s_mov_b32 s{d+3}, 0x00020000")

def kernel_wrap(name, body, vgpr, accum, sgpr=96):
    return f""".text
.globl {name}
.p2align 8
.type {name},@function
{name}:
{body}
.section .rodata,"a"
.p2align 6
.amdhsa_kernel {name}
  .amdhsa_next_free_vgpr {vgpr}
  .amdhsa_next_free_sgpr {sgpr}
  .amdhsa_accum_offset {accum}
  .amdhsa_group_segment_fixed_size 0
  .amdhsa_kernarg_size 104
  .amdhsa_user_sgpr_count 2
  .amdhsa_user_sgpr_kernarg_segment_ptr 1
  .amdhsa_system_sgpr_workgroup_id_x 1
  .amdhsa_float_denorm_mode_32 3
  .amdhsa_float_denorm_mode_16_64 3
.end_amdhsa_kernel
"""

def unpack2(a, lo, hi, src):
    a(f"v_lshlrev_b32 v{lo}, 16, v{src}")
    a(f"v_and_b32 v{hi}, 0xffff0000, v{src}")

def round_pair(a, p, tmp):
    a(f"v_cvt_pk_bf16_f32 v{tmp}, v{p}, v{p+1}")
    unpack2(a, p, p + 1, tmp)

def wave_allreduce2(a, x0, x1, t0, t1):
    for ctl in ("quad_perm:[1,0,3,2]", "quad_perm:[2,3,0,1]", "row_half_mirror", "row_mirror"):
        a("s_nop 0")
        a(f"v_add_f32_dpp v{x0}, v{x0}, v{x0} {ctl} row_mask:0xf bank_mask:0xf")
        a(f"v_add_f32_dpp v{x1}, v{x1}, v{x1} {ctl} row_mask:0xf bank_mask:0xf")
    for sw in ("v_permlane16_swap_b32", "v_permlane32_swap_b32"):
        a(f"v_mov_b32 v{t0}, v{x0}")
        a(f"v_mov_b32 v{t1}, v{x1}")
        a("s_nop 1")
        a(f"{sw} v{x0}, v{t0}")
        a(f"{sw} v{x1}, v{t1}")
        a("s_nop 0")
        a(f"v_add_f32 v{x0}, v{x0}, v{t0}")
        a(f"v_add_f32 v{x1}, v{x1}, v{t1}")

def gen_prep():
    a = Asm()
    a("s_cmp_ge_u32 s2, 512")
    a("s_cbranch_scc1 Lp_end")
    a("s_load_dwordx8 s[4:11], s[0:1], 0")
    a("s_load_dwordx2 s[12:13], s[0:1], 96")
    a("v_and_b32 v1, 63, v0")
    a("v_lshrrev_b32 v2, 6, v0")
    a("s_lshr_b32 s14, s2, 4")
    a("v_readfirstlane_b32 s16, v2")
    a("s_lshl_b32 s14, s14, 3")
    a("s_and_b32 s15, s2, 7")
    a("s_or_b32 s14, s14, s15")
    a("s_bitcmp1_b32 s2, 3")
    a("s_waitcnt lgkmcnt(0)")
    a("s_cbranch_scc1 Lp_T")
    srd(a, 20, 4, SZ_X)
    srd(a, 24, 12, SZ_X, WS_XN)
    a("s_lshl_b32 s17, s14, 3")
    a("s_lshl_b32 s18, s16, 1")
    a("s_add_u32 s17, s17, s18")
    a("s_lshl_b32 s18, s17, 11")
    a("v_lshlrev_b32 v2, 4, v1")
    D = 8
    F = 24
    for i in range(4):
        a(f"buffer_load_dwordx4 {vr(D+4*i,4)}, v2, s[20:23], s18 offen offset:{1024*i}")
    a("v_lshrrev_b32 v3, 2, v1")
    a("v_lshlrev_b32 v3, 14, v3")
    a("v_and_b32 v4, 3, v1")
    a("v_lshl_add_u32 v3, v4, 8, v3")
    a("s_lshr_b32 s19, s17, 8")
    a("s_lshl_b32 s19, s19, 19")
    a("s_bfe_u32 s28, s17, 0x40004")
    a("s_lshl_b32 s28, s28, 10")
    a("s_add_u32 s19, s19, s28")
    a("s_and_b32 s28, s17, 15")
    a("s_lshl_b32 s28, s28, 4")
    a("s_add_u32 s19, s19, s28")
    a(f"s_add_u32 s28, s19, {16*16384}")
    S0, S1, T0, T1 = 56, 58, 60, 61
    for row in range(2):
        a(f"s_waitcnt vmcnt({2 - 2*row})")
        for i in range(8):
            unpack2(a, F + 16*row + 2*i, F + 16*row + 2*i + 1, D + 8*row + i)
        S = S0 if row == 0 else S1
        a(f"v_pk_add_f32 {vr(S,2)}, {vr(F+16*row,2)}, {vr(F+16*row+2,2)}")
        for i in range(2, 8):
            a(f"v_pk_add_f32 {vr(S,2)}, {vr(S,2)}, {vr(F+16*row+2*i,2)}")
        a(f"v_add_f32 v{S}, v{S}, v{S+1}")
    a("s_nop 0")
    wave_allreduce2(a, S0, S1, T0, T1)
    a(f"v_mul_f32 v{S0}, 0x3a800000, v{S0}")
    a(f"v_mul_f32 v{S1}, 0x3a800000, v{S1}")
    Q0, Q1, C = 62, 64, 66
    for row in range(2):
        S = S0 if row == 0 else S1
        Q = Q0 if row == 0 else Q1
        for i in range(8):
            a(f"v_pk_add_f32 {vr(C,2)}, {vr(F+16*row+2*i,2)}, {vr(S,2)} op_sel_hi:[1,0] neg_lo:[0,1] neg_hi:[0,1]")
            if i == 0:
                a(f"v_pk_mul_f32 {vr(Q,2)}, {vr(C,2)}, {vr(C,2)}")
            else:
                a(f"v_pk_fma_f32 {vr(Q,2)}, {vr(C,2)}, {vr(C,2)}, {vr(Q,2)}")
        a(f"v_add_f32 v{Q}, v{Q}, v{Q+1}")
    a("s_nop 0")
    wave_allreduce2(a, Q0, Q1, T0, T1)
    M = 68
    a(f"v_mul_f32 v{C}, 0x3a800000, v{Q0}")
    a(f"v_mul_f32 v{C+1}, 0x3a800000, v{Q1}")
    a(f"v_mov_b32 v{M}, v{S0}")
    a(f"v_mov_b32 v{M+1}, v{S1}")
    round_pair(a, C, T0)
    round_pair(a, M, T1)
    a(f"v_add_f32 v{C}, 0x3727c5ac, v{C}")
    a(f"v_add_f32 v{C+1}, 0x3727c5ac, v{C+1}")
    round_pair(a, C, T0)
    a(f"v_sqrt_f32 v{C}, v{C}")
    a(f"v_sqrt_f32 v{C+1}, v{C+1}")
    a("s_nop 0")
    round_pair(a, C, T0)
    a(f"v_rcp_f32 v{Q0}, v{C}")
    a(f"v_rcp_f32 v{Q1}, v{C+1}")
    a(f"v_mov_b32 v{S0}, v{M}")
    a(f"v_mov_b32 v{S1}, v{M+1}")
    for row in range(2):
        S = S0 if row == 0 else S1
        Q = Q0 if row == 0 else Q1
        for i in range(8):
            p = F + 16*row + 2*i
            a(f"v_pk_add_f32 {vr(p,2)}, {vr(p,2)}, {vr(S,2)} op_sel_hi:[1,0] neg_lo:[0,1] neg_hi:[0,1]")
            round_pair(a, p, T0)
            a(f"v_pk_mul_f32 {vr(p,2)}, {vr(p,2)}, {vr(Q,2)} op_sel_hi:[1,0]")
            a(f"v_cvt_pk_bf16_f32 v{D+8*row+i}, v{p}, v{p+1}")
        a(f"buffer_store_dwordx4 {vr(D+8*row,4)}, v3, s[24:27], s19 offen offset:{16*row}")
        a(f"buffer_store_dwordx4 {vr(D+8*row+4,4)}, v3, s[24:27], s28 offen offset:{16*row}")
    a("s_endpgm")
    a("Lp_T:")
    srd(a, 20, 6, SZ_X)
    srd(a, 24, 8, SZ_X)
    srd(a, 28, 10, 1024 * 8)
    srd(a, 32, 12, SZ_X, WS_UR)
    a("s_lshr_b32 s17, s14, 4")
    a("s_lshl_b32 s17, s17, 7")
    a("s_lshl_b32 s18, s16, 5")
    a("s_add_u32 s17, s17, s18")
    a("s_and_b32 s18, s14, 15")
    a("s_lshl_b32 s18, s18, 6")
    a("v_lshrrev_b32 v2, 4, v1")
    a("v_lshl_add_u32 v2, v2, 3, s17")
    a("v_and_b32 v3, 15, v1")
    a("v_lshl_add_u32 v3, v3, 2, s18")
    a("v_lshlrev_b32 v4, 11, v2")
    a("v_lshl_add_u32 v4, v3, 1, v4")
    a(f"v_subrev_u32 v5, {3*2048}, v4")
    a("v_bfrev_b32 v6, 1")
    a("v_cmp_eq_u32 vcc, 0, v2")
    a("s_mov_b32 s36, 4096")
    a("s_mov_b32 s37, 8192")
    a("v_cndmask_b32 v5, v5, v6, vcc")
    a("s_mov_b32 s38, 12288")
    a("v_lshlrev_b32 v6, 3, v3")
    so = ["0", "s36", "s37", "s38"]
    KR, VR_, WR = 8, 30, 46
    a(f"buffer_load_dwordx4 {vr(WR+2,4)}, v6, s[28:31], 0 offen")
    a(f"buffer_load_dwordx4 {vr(WR+6,4)}, v6, s[28:31], 0 offen offset:16")
    WR += 2
    a(f"buffer_load_dwordx2 {vr(KR,2)}, v5, s[20:23], 0 offen")
    a(f"buffer_load_dwordx2 {vr(KR+2,2)}, v5, s[20:23], 0 offen offset:2048")
    a(f"buffer_load_dwordx2 {vr(KR+4,2)}, v5, s[20:23], s36 offen")
    for i in range(8):
        a(f"buffer_load_dwordx2 {vr(KR+6+2*i,2)}, v4, s[20:23], {so[i>>1]} offen offset:{2048*(i&1)}")
    for i in range(8):
        a(f"buffer_load_dwordx2 {vr(VR_+2*i,2)}, v4, s[24:27], {so[i>>1]} offen offset:{2048*(i&1)}")
    a("v_lshlrev_b32 v7, 12, v3")
    a("v_sub_u32 v2, 2040, v2")
    a("v_lshl_add_u32 v7, v2, 1, v7")
    W = 56
    KF = 72
    U = 116
    P = 148
    T = 156
    VF = 158
    O = 160
    a("s_waitcnt vmcnt(19)")
    for d in range(4):
        unpack2(a, W + 0 + d, W + 4 + d, WR + 2*d)
        unpack2(a, W + 8 + d, W + 12 + d, WR + 2*d + 1)
    for r in range(11):
        a(f"s_waitcnt vmcnt({18 - r})")
        unpack2(a, KF + 4*r, KF + 4*r + 1, KR + 2*r)
        unpack2(a, KF + 4*r + 2, KF + 4*r + 3, KR + 2*r + 1)
    for i in range(8):
        a(f"s_waitcnt vmcnt({7 - i})")
        for dp in range(2):
            for t in range(4):
                a(f"v_pk_mul_f32 {vr(P+2*t,2)}, {vr(KF+4*(i+t)+2*dp,2)}, {vr(W+4*(3-t)+2*dp,2)}")
            for t in range(4):
                round_pair(a, P + 2*t, T + (t & 1))
            unpack2(a, VF, VF + 1, VR_ + 2*i + dp)
            for t in range(1, 4):
                a(f"v_pk_add_f32 {vr(P,2)}, {vr(P,2)}, {vr(P+2*t,2)}")
                round_pair(a, P, T)
            a(f"v_pk_mul_f32 {vr(U+4*i+2*dp,2)}, {vr(P,2)}, {vr(VF,2)}")
    for d in range(4):
        for j in range(4):
            a(f"v_cvt_pk_bf16_f32 v{O+4*d+j}, v{U+4*(7-2*j)+d}, v{U+4*(6-2*j)+d}")
        a(f"buffer_store_dwordx4 {vr(O+4*d,4)}, v7, s[32:35], {so[d]} offen")
    a("Lp_end:")
    a("s_endpgm")
    return kernel_wrap("prep_kernel", a.text(), 176, 176)

CV_UR = 0
CV_KC = 4608
CV_KS = 4160
CV_LDS = CV_KC + 4 * CV_KS

def gen_conv():
    a = Asm()
    a("s_cmp_ge_u32 s2, 256")
    a("s_cbranch_scc1 Lc_end")
    a("s_load_dwordx4 s[4:7], s[0:1], 32")
    a("s_load_dwordx2 s[8:9], s[0:1], 96")
    a("v_and_b32 v1, 63, v0")
    a("v_lshrrev_b32 v2, 6, v0")
    a("s_lshl_b32 s10, s2, 2")
    a("v_readfirstlane_b32 s11, v2")
    a("v_lshlrev_b32 v2, 4, v1")
    a("s_waitcnt lgkmcnt(0)")
    srd(a, 12, 4, SZ_X)
    srd(a, 16, 6, 2048)
    srd(a, 20, 8, SZ_X, WS_UR)
    srd(a, 24, 8, SZ_X, WS_ZT)
    a("s_add_u32 s10, s10, s11")
    a("s_lshl_b32 s28, s10, 12")
    a(f"s_mul_i32 s29, s11, {CV_LDS}")
    a("s_lshl_b32 s30, s10, 1")
    a("v_mov_b32 v3, 0")
    a("buffer_load_dwordx2 v[4:5], v3, s[12:15], s28 offen")
    a("buffer_load_ushort v6, v3, s[16:19], s30 offen")
    a("s_mov_b32 m0, s29")
    a("s_nop 0")
    for i in range(4):
        a(f"buffer_load_dwordx4 v2, s[20:23], s28 offen offset:{1024*i} lds")
    for c in range(4):
        a(f"s_add_u32 m0, s29, {CV_KC + c*CV_KS + 32}")
        a(f"s_add_u32 s31, s28, {2*c}")
        for i in range(4):
            a(f"buffer_load_dwordx4 v2, s[12:15], s31 offen offset:{1024*i} lds")
    for i in range(4):
        a(f"v_mov_b32 v{8+i}, 0")
    a("v_and_b32 v7, 31, v1")
    a("v_lshlrev_b32 v7, 4, v7")
    a("v_add_u32 v7, s29, v7")
    a(f"ds_write_b128 v7, v[8:11] offset:{CV_UR + 4096}")
    a("v_and_b32 v12, 3, v1")
    a("v_bfe_u32 v13, v1, 2, 2")
    a(f"v_mul_u32_u24 v7, {CV_KS}, v12")
    a("v_lshl_add_u32 v7, v13, 3, v7")
    a("v_add_u32 v7, s29, v7")
    a("v_lshlrev_b32 v12, 4, v12")
    a("v_sub_u32 v12, 48, v12")
    a("v_cmp_eq_u32 vcc, 3, v13")
    a("s_waitcnt vmcnt(20)")
    a("v_lshlrev_b64 v[4:5], 16, v[4:5]")
    a("v_lshlrev_b64 v[4:5], v12, v[4:5]")
    a("v_cndmask_b32 v4, 0, v4, vcc")
    a("v_cndmask_b32 v5, 0, v5, vcc")
    a(f"ds_write_b64 v7, v[4:5] offset:{CV_KC}")
    a("v_lshlrev_b32 v6, 16, v6")
    a("v_and_b32 v12, 15, v1")
    a("v_lshrrev_b32 v13, 4, v1")
    a("v_add_u32 v14, 1, v12")
    a("v_and_b32 v15, 3, v14")
    a(f"v_mul_u32_u24 v15, {CV_KS}, v15")
    a("v_lshrrev_b32 v14, 2, v14")
    a("v_lshl_add_u32 v15, v14, 3, v15")
    a("v_lshl_add_u32 v15, v13, 4, v15")
    a(f"v_add_u32 v15, {CV_KC}, v15")
    a("v_add_u32 v15, s29, v15")
    a("v_lshlrev_b32 v14, 1, v12")
    a("v_sub_u32 v14, 30, v14")
    a("v_add_u32 v14, v14, v13")
    a("v_lshlrev_b32 v14, 4, v14")
    a("v_add_u32 v14, s29, v14")
    a("v_lshlrev_b32 v16, 5, v12")
    a("v_lshl_add_u32 v16, v13, 3, v16")
    a("v_sub_u32 v17, 504, v16")
    a("v_add_u32 v17, s29, v17")
    ACC = 32
    FA = [64, 128]
    FB = [96, 160]
    for i in range(32):
        a(f"v_mov_b32 v{ACC+i}, 0")
    a("s_waitcnt vmcnt(0) lgkmcnt(0)")
    def reads(r, st):
        L = []
        for j in range(8):
            L.append(f"ds_read_b128 {vr(FB[st]+4*j,4)}, v14 offset:{64*(56-8*j+r)}")
            L.append(f"ds_read_b64 {vr(FA[st]+4*j,2)}, v15 offset:{512*j+64*r}")
            L.append(f"ds_read_b64 {vr(FA[st]+4*j+2,2)}, v15 offset:{512*j+64*r+8}")
        return L
    for s in reads(0, 0):
        a(s)
    for r in range(8):
        st = r & 1
        a("s_waitcnt lgkmcnt(0)")
        nxt = reads(r + 1, st ^ 1) if r < 7 else []
        mf = []
        for j in range(8):
            for d in range(8 - j):
                c = j + d
                mf.append(f"v_mfma_f32_16x16x32_bf16 {vr(ACC+4*c,4)}, {vr(FA[st]+4*j,4)}, {vr(FB[st]+4*d,4)}, {vr(ACC+4*c,4)}")
        for i, m in enumerate(mf):
            a(m)
            if i < len(nxt):
                a(nxt[i])
    UU = 64
    for c in range(8):
        a(f"ds_read_b64 {vr(UU+2*c,2)}, v17 offset:{512*(7-c)}")
    a("s_nop 7")
    a("s_waitcnt lgkmcnt(0)")
    P, Q, T = 96, 100, 104
    for c in range(8):
        y = ACC + 4*c
        round_pair(a, y, T)
        round_pair(a, y + 2, T + 1)
        unpack2(a, P + 3, P + 2, UU + 2*c)
        unpack2(a, P + 1, P + 0, UU + 2*c + 1)
        a(f"v_pk_mul_f32 {vr(P,2)}, {vr(P,2)}, v[6:7] op_sel_hi:[1,0]")
        a(f"v_pk_mul_f32 {vr(P+2,2)}, {vr(P+2,2)}, v[6:7] op_sel_hi:[1,0]")
        round_pair(a, P, T)
        round_pair(a, P + 2, T + 1)
        a(f"v_pk_add_f32 {vr(y,2)}, {vr(y,2)}, {vr(P,2)}")
        a(f"v_pk_add_f32 {vr(y+2,2)}, {vr(y+2,2)}, {vr(P+2,2)}")
        a(f"v_cvt_pk_bf16_f32 v{y}, v{y}, v{y+1}")
        a(f"v_cvt_pk_bf16_f32 v{y+1}, v{y+2}, v{y+3}")
        a(f"buffer_store_dwordx2 {vr(y,2)}, v16, s[24:27], s28 offen offset:{512*c}")
    a("Lc_end:")
    a("s_endpgm")
    return kernel_wrap("conv_kernel", a.text(), 192, 192)

def header(launches):
    ref = open("cdna_kernels/" + NAME + ".s.ref").read().split("\n")
    hdr = [l for l in ref if l.startswith(";") and "@launch" not in l and "Override" not in l and "grid=ceil" not in l]
    out = "\n".join(hdr) + "\n"
    for k, g, b, lds in launches:
        out += f"; @launch kernel={k} grid=({g},1,1) block=({b},1,1) lds={lds}\n"
    out += '.amdgcn_target "amdgcn-amd-amdhsa--gfx950"\n'
    return out

if __name__ == "__main__":
    import gen_gemm
    launches = [("prep_kernel", 512, 256, 0), ("conv_kernel", 256, 256, 4 * CV_LDS),
                ("gemm1_kernel", 256, 256, gen_gemm.G1_LDS), ("gemm2_kernel", 256, 256, gen_gemm.G2_LDS)]
    txt = header(launches) + gen_prep() + gen_conv() + gen_gemm.gen_gemm1() + gen_gemm.gen_gemm2()
    out = sys.argv[1] if len(sys.argv) > 1 else "cdna_kernels/" + NAME + ".s"
    open(out, "w").write(txt)
    print("wrote", out, len(txt))
```
